```python
import torch

def _softmax(x, axis=-1):
    return torch.softmax(x, dim=axis)

def _gelu(x):
    return torch.nn.functional.gelu(x, approximate='tanh')

def _silu(x):
    return torch.nn.functional.silu(x)

def _sigmoid(x):
    return torch.sigmoid(x)

def _layernorm(x, axis=-1, eps=1e-05):
    m = x.mean(dim=axis, keepdim=True)
    v = x.var(dim=axis, keepdim=True, unbiased=False)
    return (x - m) / torch.sqrt(v + eps)

def _scatter_add(tgt, idx, src, axis=0):
    return tgt.clone().index_add_(axis, idx, src)

def _segment_sum(src, seg, n):
    out = torch.zeros((n,) + src.shape[1:], dtype=src.dtype)
    return out.index_add_(0, seg, src)

def _pad(x, pw):
    flat = tuple((v for pair in reversed(pw) for v in pair))
    return torch.nn.functional.pad(x, flat)
kernel_name = 'adaLN_cond__memory_aug_recurrent_mem_tr__geglu_ffn__prompt'

def setup_inputs():

    _w = lambda a: (lambda t: t.to(torch.bfloat16) if t.is_floating_point() else t)(torch.as_tensor(a))

    def _A_setup():
        B, S, Dm = (1, 2048, 576)
        H, Dh = (32, 128)
        M, seg = (8, 32)
        seg = min(seg, S)
        S = S // seg * seg
        return {'x': _w((lambda *s: torch.randn(*s, dtype=torch.bfloat16) * 0.05)(B, S, Dm)), 'mem0': _w((lambda *s: torch.randn(*s, dtype=torch.bfloat16) * 0.4)(B, M, Dm)), 'Wq': _w((lambda *s: torch.randn(*s, dtype=torch.bfloat16) * 3.2)(Dm, H, Dh) * Dm ** (-0.5)), 'Wk': _w((lambda *s: torch.randn(*s, dtype=torch.bfloat16) * 3.2)(Dm, H, Dh) * Dm ** (-0.5)), 'Wv': _w((lambda *s: torch.randn(*s, dtype=torch.bfloat16) * 0.4)(Dm, H, Dh) * Dm ** (-0.5)), 'Wo': _w((lambda *s: torch.randn(*s, dtype=torch.bfloat16) * 0.4)(H, Dh, Dm) * (H * Dh) ** (-0.5)), 'seg_len': seg}
    _A_in = _A_setup()

    def _B_setup():
        B, S, D, F = (1, 2048, 576, 4608)
        return {'x': _w((lambda *s: torch.randn(*s, dtype=torch.bfloat16) * 0.05)(B, S, D)), 'w_gate': _w((lambda *s: torch.randn(*s, dtype=torch.bfloat16) * 0.05)(D, F)), 'w_up': _w((lambda *s: torch.randn(*s, dtype=torch.bfloat16) * 0.05)(D, F)), 'w_down': _w((lambda *s: torch.randn(*s, dtype=torch.bfloat16) * 0.05)(F, D))}
    _B_in = _B_setup()
    return {'A_x': _A_in['x'], 'A_mem0': _A_in['mem0'], 'A_Wq': _A_in['Wq'], 'A_Wk': _A_in['Wk'], 'A_Wv': _A_in['Wv'], 'A_Wo': _A_in['Wo'], 'A_seg_len': _A_in['seg_len'], 'B_x': _B_in['x'], 'B_w_gate': _B_in['w_gate'], 'B_w_up': _B_in['w_up'], 'B_w_down': _B_in['w_down'], 'c': _w((lambda *s: torch.randn(*s, dtype=torch.bfloat16) * 0.1)(1, 576) * 8.0), 'w_mod': _w((lambda *s: torch.randn(*s, dtype=torch.bfloat16) * 0.1)(576, 6 * 576) * 576 ** (-0.5) * 8.0)}

def reference(A_x, A_mem0, A_Wq, A_Wk, A_Wv, A_Wo, A_seg_len, B_x, B_w_gate, B_w_up, B_w_down, c, w_mod):

    def _A_ref(x, mem0, Wq, Wk, Wv, Wo, seg_len):
        B, S, Dm = x.shape
        H, Dh = (Wq.shape[1], Wq.shape[2])
        M = mem0.shape[1]
        scale = Dh ** (-0.5)
        n_seg = S // seg_len
        L = M + seg_len
        idx = torch.arange(L)
        mask = (idx[:, None] < M) | (idx[:, None] >= idx[None, :])
        mem = mem0
        outs = []
        for s in range(n_seg):
            xs = x[:, s * seg_len:(s + 1) * seg_len, :].clone()
            h = torch.concatenate([mem, xs], axis=1)
            q = torch.einsum('btd,dhe->bhte', h, Wq)
            k = torch.einsum('btd,dhe->bhte', h, Wk)
            v = torch.einsum('btd,dhe->bhte', h, Wv)
            scores = torch.einsum('bhqe,bhke->bhqk', q, k) * scale
            scores = torch.where(mask[None, None], scores, -1000000000.0)
            p = _softmax(scores, axis=-1)
            o = torch.einsum('bhqk,bhke->bhqe', p, v)
            o = torch.einsum('bhte,hed->btd', o, Wo)
            mem = o[:, :M, :].clone()
            outs.append(o[:, M:, :])
        return torch.concatenate(outs, axis=1)

    def _B_ref(x, w_gate, w_up, w_down):
        return _gelu(x @ w_gate) * (x @ w_up) @ w_down
    x = A_x
    mod = (_silu(c) @ w_mod).reshape(c.shape[0], 6, 1, -1)
    sa, ca, ga, sb, cb, gb = (mod[:, 0].clone(), mod[:, 1].clone(), mod[:, 2].clone(), mod[:, 3].clone(), mod[:, 4].clone(), mod[:, 5].clone())
    h = _layernorm(x, axis=-1) * (1 + ca) + sa
    x = x + ga * _A_ref(h, A_mem0, A_Wq, A_Wk, A_Wv, A_Wo, A_seg_len)
    h = _layernorm(x, axis=-1) * (1 + cb) + sb
    x = x + gb * _B_ref(h, B_w_gate, B_w_up, B_w_down)
    return x
```

```python
class Asm:
    def __init__(self):
        self.lines = []
        self.uid = 0

    def __call__(self, s):
        for ln in s.strip("\n").split("\n"):
            self.lines.append("    " + ln.strip() if not ln.strip().endswith(":") else ln.strip())

    def label(self, name):
        self.lines.append(name + ":")

    def newlabel(self, base):
        self.uid += 1
        return f"L_{base}_{self.uid}"

    def comment(self, s):
        self.lines.append("    ; " + s)

    def text(self):
        return "\n".join(self.lines) + "\n"


def vr(base, n=1):
    return f"v{base}" if n == 1 else f"v[{base}:{base + n - 1}]"


def ar(base, n=1):
    return f"a{base}" if n == 1 else f"a[{base}:{base + n - 1}]"


def sr(base, n=1):
    return f"s{base}" if n == 1 else f"s[{base}:{base + n - 1}]"


def kernel_header(a, name):
    a.lines.append(".globl " + name)
    a.lines.append(".p2align 8")
    a.lines.append(f".type {name},@function")
    a.label(name)


def kernel_desc(name, vgpr, sgpr=102, accum=None, wgy=False):
    if accum is None:
        accum = (vgpr + 3) // 4 * 4
    s = f""".p2align 6
.amdhsa_kernel {name}
  .amdhsa_next_free_vgpr {vgpr}
  .amdhsa_next_free_sgpr {sgpr}
  .amdhsa_accum_offset {accum}
  .amdhsa_group_segment_fixed_size 0
  .amdhsa_kernarg_size 128
  .amdhsa_user_sgpr_count 2
  .amdhsa_user_sgpr_kernarg_segment_ptr 1
  .amdhsa_system_sgpr_workgroup_id_x 1
"""
    if wgy:
        s += "  .amdhsa_system_sgpr_workgroup_id_y 1\n"
    s += ".end_amdhsa_kernel\n"
    return s


def srd(a, d, b, nbytes):
    a(f"""
    s_mov_b32 s{d}, s{b}
    s_and_b32 s{d+1}, s{b+1}, 0xffff
    s_mov_b32 s{d+2}, {nbytes}
    s_mov_b32 s{d+3}, 0x00020000
    """)


def srd_off(a, d, b, off, nbytes):
    a(f"""
    s_add_u32 s{d}, s{b}, {off}
    s_addc_u32 s{d+1}, s{b+1}, 0
    s_and_b32 s{d+1}, s{d+1}, 0xffff
    s_mov_b32 s{d+2}, {nbytes}
    s_mov_b32 s{d+3}, 0x00020000
    """)
```

```python
from asmlib import *
from kern_basic import *

SCALE_HEX = 0x3db504f3


def k_attn(a, name):
    kernel_header(a, name)
    Lend = a.newlabel("end")
    a(f"""
    s_load_dwordx2 s[4:5], s[0:1], {KA_WS}
    s_cmp_ge_u32 s2, 512
    s_cbranch_scc1 {Lend}
    v_lshrrev_b32 v1, 6, v0
    v_and_b32 v2, 63, v0                 ; lane
    s_nop 0
    v_readfirstlane_b32 s20, v1          ; wave
    s_lshr_b32 s21, s2, 3                ; seg
    s_and_b32 s22, s2, 7
    s_lshl_b32 s22, s22, 2
    s_add_u32 s22, s22, s20              ; head
    s_waitcnt lgkmcnt(0)
    """)
    srd_off(a, 8, 4, WS_Q, 2048 * 4096 * 2)
    srd_off(a, 12, 4, WS_K, 2048 * 4096 * 2)
    srd_off(a, 16, 4, WS_VT, 2048 * 4096 * 2)
    srd_off(a, 24, 4, WS_KM, 64 * 32 * 2048)
    srd_off(a, 28, 4, WS_VM, 64 * 32 * 2048)
    srd_off(a, 32, 4, WS_O, 2048 * 4096 * 2)
    a(f"""
    v_and_b32 v3, 31, v2                 ; l&31
    v_lshrrev_b32 v4, 5, v2              ; hh
    v_lshlrev_b32 v5, 13, v3
    v_lshl_add_u32 v5, v4, 4, v5
    s_lshl_b32 s36, s21, 18
    s_lshl_b32 s37, s22, 8
    s_add_u32 s36, s36, s37
    v_and_b32 v6, 7, v2
    v_lshlrev_b32 v6, 8, v6
    v_lshl_add_u32 v6, v4, 4, v6
    s_lshl_b32 s38, s21, 5
    s_add_u32 s38, s38, s22
    s_lshl_b32 s39, s38, 13
    s_lshl_b32 s38, s38, 11
    s_add_u32 s42, s39, 4096
    v_lshlrev_b32 v7, 6, v3
    v_lshl_add_u32 v7, v4, 4, v7
    v_lshlrev_b32 v8, 4, v3
    """)
    QF, KF, MF = 16, 48, 80
    VF, VMF = 112, 144
    SX, SM = 160, 176
    for kk in range(8):
        a(f"buffer_load_dwordx4 v[{QF+4*kk}:{QF+4*kk+3}], v5, s[8:11], s36 offen offset:{kk*32}")
        a(f"buffer_load_dwordx4 v[{KF+4*kk}:{KF+4*kk+3}], v5, s[12:15], s36 offen offset:{kk*32}")
        a(f"buffer_load_dwordx4 v[{MF+4*kk}:{MF+4*kk+3}], v6, s[24:27], s38 offen offset:{kk*32}")
    for et in range(4):
        for kk in range(2):
            a(f"buffer_load_dwordx4 v[{VF+(et*2+kk)*4}:{VF+(et*2+kk)*4+3}], v7, s[16:19], s{39 if et < 2 else 42} offen offset:{(et%2)*2048+kk*32}")
        a(f"buffer_load_dwordx4 v[{VMF+et*4}:{VMF+et*4+3}], v8, s[28:31], s38 offen offset:{et*512}")
    for r in range(32):
        a(f"v_mov_b32 v{SX+r}, 0")
    for kk in range(8):
        a(f"s_waitcnt vmcnt({12 + 3*(7-kk)})")
        a(f"v_mfma_f32_32x32x16_bf16 v[{SX}:{SX+15}], v[{KF+4*kk}:{KF+4*kk+3}], v[{QF+4*kk}:{QF+4*kk+3}], v[{SX}:{SX+15}]")
        a(f"v_mfma_f32_32x32x16_bf16 v[{SM}:{SM+15}], v[{MF+4*kk}:{MF+4*kk+3}], v[{QF+4*kk}:{QF+4*kk+3}], v[{SM}:{SM+15}]")
    a("s_nop 7\ns_nop 7")
    T = 192
    a(f"""
    s_mov_b32 s40, {SCALE_HEX}
    v_lshlrev_b32 v9, 2, v4              ; 4*hh
    v_sub_u32 v9, v3, v9
    v_mov_b32 v10, 0xce6e6b28            ; -1e9
    """)
    regs = [SX + r for r in range(16)] + [SM + r for r in range(4)]
    for idx in range(0, 20, 2):
        r0, r1 = regs[idx], regs[idx + 1]
        round_bf16_pair(a, r0, r1, T)
        a(f"""
        v_mul_f32 v{r0}, s40, v{r0}
        v_mul_f32 v{r1}, s40, v{r1}
        """)
        round_bf16_pair(a, r0, r1, T)
    for r in range(16):
        j = (r & 3) + 8 * (r >> 2)
        a(f"""
        v_cmp_le_i32 vcc, {j}, v9
        s_nop 1
        v_cndmask_b32 v{SX+r}, v10, v{SX+r}, vcc
        """)
    a(f"v_max_f32 v{T}, v{regs[0]}, v{regs[1]}")
    for r in regs[2:]:
        a(f"v_max_f32 v{T}, v{T}, v{r}")
    a(f"""
    v_mov_b32 v{T+1}, v{T}
    s_nop 1
    v_permlane32_swap_b32 v{T}, v{T+1}
    s_nop 1
    v_max_f32 v{T}, v{T}, v{T+1}
    s_mov_b32 s41, 0x3fb8aa3b
    v_mul_f32 v{T}, s41, v{T}
    v_mov_b32 v{T+2}, 0
    """)
    for r in regs:
        a(f"""
        v_fma_f32 v{r}, v{r}, s41, -v{T}
        v_exp_f32 v{r}, v{r}
        s_nop 0
        v_add_f32 v{T+2}, v{T+2}, v{r}
        """)
    a(f"""
    v_mov_b32 v{T+3}, v{T+2}
    s_nop 1
    v_permlane32_swap_b32 v{T+2}, v{T+3}
    s_nop 1
    v_add_f32 v{T+2}, v{T+2}, v{T+3}
    v_rcp_f32 v{T+2}, v{T+2}
    s_nop 0
    """)
    PX, PM = 200, 208
    for idx in range(0, 20, 2):
        r0, r1 = regs[idx], regs[idx + 1]
        dst = PX + idx // 2 if idx < 16 else PM + (idx - 16) // 2
        a(f"""
        v_mul_f32 v{r0}, v{r0}, v{T+2}
        v_mul_f32 v{r1}, v{r1}, v{T+2}
        v_cvt_pk_bf16_f32 v{dst}, v{r0}, v{r1}
        """)
    a(f"""
    v_mov_b32 v{PM+2}, 0
    v_mov_b32 v{PM+3}, 0
    s_nop 1
    """)
    for kk in range(2):
        a(f"""
        v_permlane32_swap_b32 v{PX+4*kk}, v{PX+4*kk+2}
        v_permlane32_swap_b32 v{PX+4*kk+1}, v{PX+4*kk+3}
        """)
    a(f"""
    v_permlane32_swap_b32 v{PM}, v{PM+2}
    v_permlane32_swap_b32 v{PM+1}, v{PM+3}
    s_nop 1
    s_waitcnt vmcnt(0)
    """)
    OA = 16
    for r in range(64):
        a(f"v_mov_b32 v{OA+r}, 0")
    a("s_nop 1")
    for et in range(4):
        o = OA + et * 16
        a(f"v_mfma_f32_32x32x16_bf16 v[{o}:{o+15}], v[{VMF+et*4}:{VMF+et*4+3}], v[{PM}:{PM+3}], v[{o}:{o+15}]")
        for kk in range(2):
            vf = VF + (et * 2 + kk) * 4
            a(f"v_mfma_f32_32x32x16_bf16 v[{o}:{o+15}], v[{vf}:{vf+3}], v[{PX+4*kk}:{PX+4*kk+3}], v[{o}:{o+15}]")
    a("s_nop 7\ns_nop 7")
    a(f"""
    v_lshlrev_b32 v5, 13, v3
    v_lshl_add_u32 v5, v4, 3, v5
    """)
    for et in range(4):
        for q in range(4):
            r = OA + et * 16 + 4 * q
            a(f"""
            v_cvt_pk_bf16_f32 v{T}, v{r}, v{r+1}
            v_cvt_pk_bf16_f32 v{T+1}, v{r+2}, v{r+3}
            buffer_store_dwordx2 v[{T}:{T+1}], v5, s[32:35], s36 offen offset:{et*64+q*16}
            s_nop 0
            """)
    a.label(Lend)
    a("s_endpgm")
    return kernel_desc(name, 216, 48)
```

```python
from asmlib import *

KA_X, KA_MEM0, KA_WQ, KA_WK, KA_WV, KA_WO = 0, 8, 16, 24, 32, 40
KA_WG, KA_WU, KA_WD, KA_C, KA_WMOD, KA_OUT, KA_DBG, KA_WS = 64, 72, 80, 88, 96, 104, 112, 120

WS_MOD = 0x0
WS_H1 = 0x10000
WS_Q = 0x400000
WS_K = 0x1400000
WS_VT = 0x2400000
WS_KM = 0x3400000
WS_VM = 0x3800000
WS_O = 0x4000000
WS_X2 = 0x5000000
WS_H2 = 0x5400000
WS_ACT = 0x6000000
WS_MB1 = 0x8000000
WS_MB2 = 0x8120000
WS_FLAGS = 0x8130000
WS_ZERO_BYTES = 0x140000

S_ROWS = 2048
DM = 576
XBYTES = S_ROWS * DM * 2


def round_bf16(a, v, tmp):
    a(f"""
    v_cvt_pk_bf16_f32 v{tmp}, v{v}, v{v}
    v_lshlrev_b32 v{v}, 16, v{tmp}
    """)


def round_bf16_pair(a, v0, v1, tmp):
    a(f"""
    v_cvt_pk_bf16_f32 v{tmp}, v{v0}, v{v1}
    v_lshlrev_b32 v{v0}, 16, v{tmp}
    v_and_b32 v{v1}, 0xffff0000, v{tmp}
    """)


def wave_sum(a, v, t, s):
    for off in (0x041F, 0x081F, 0x101F, 0x201F, 0x401F):
        a(f"""
        ds_swizzle_b32 v{t}, v{v} offset:{off}
        s_waitcnt lgkmcnt(0)
        v_add_f32 v{v}, v{v}, v{t}
        """)
    a(f"""
    s_nop 1
    v_readlane_b32 s{s}, v{v}, 32
    s_nop 3
    v_add_f32 v{v}, s{s}, v{v}
    s_nop 1
    v_readlane_b32 s{s}, v{v}, 0
    s_nop 3
    """)


MOD_WGS = 27
ZERO_WGS = WS_ZERO_BYTES // 16384


def k_mod(a, name):
    kernel_header(a, name)
    Lz = a.newlabel("zero")
    Lend = a.newlabel("end")
    a(f"""
    s_load_dwordx2 s[4:5], s[0:1], {KA_WS}
    s_load_dwordx2 s[6:7], s[0:1], {KA_WMOD}
    s_load_dwordx2 s[20:21], s[0:1], {KA_C}
    s_cmp_ge_u32 s2, {MOD_WGS + ZERO_WGS}
    s_cbranch_scc1 {Lend}
    s_waitcnt lgkmcnt(0)
    s_cmp_ge_u32 s2, {MOD_WGS}
    s_cbranch_scc1 {Lz}
    """)
    srd(a, 8, 6, 576 * 3456 * 2)
    srd(a, 12, 20, 576 * 2)
    srd_off(a, 16, 4, WS_MOD, 3456 * 4)
    a(f"""
    v_and_b32 v1, 63, v0               ; lane
    v_lshrrev_b32 v2, 6, v0            ; wave
    v_lshlrev_b32 v3, 1, v0
    buffer_load_ushort v4, v3, s[12:15], 0 offen
    s_nop 0
    v_readfirstlane_b32 s22, v2
    s_lshl_b32 s23, s2, 8
    s_mul_i32 s24, s22, {64 * 6912}
    s_add_u32 s24, s24, s23
    v_lshlrev_b32 v5, 2, v1            ; lane*4
    s_waitcnt vmcnt(0)
    v_lshlrev_b32 v4, 16, v4           ; c as f32
    v_mul_f32 v6, 0xbfb8aa3b, v4       ; -x*log2e
    v_exp_f32 v6, v6
    s_nop 0
    v_add_f32 v6, 1.0, v6
    v_rcp_f32 v6, v6
    s_nop 0
    v_mul_f32 v4, v4, v6               ; silu
    """)
    round_bf16(a, 4, 6)
    a("""
    v_mov_b32 v8, 0
    v_mov_b32 v9, 0
    """)
    for b in range(4):
        for i in range(16):
            r = b * 16 + i
            a(f"s_add_u32 s25, s24, {r * 6912}")
            a(f"buffer_load_dword v{16 + i}, v5, s[8:11], s25 offen")
        for i in range(16):
            r = b * 16 + i
            a(f"""
            v_readlane_b32 s26, v4, {r}
            s_waitcnt vmcnt({15 - i})
            v_lshlrev_b32 v10, 16, v{16 + i}
            v_and_b32 v11, 0xffff0000, v{16 + i}
            v_fmac_f32 v8, s26, v10
            v_fmac_f32 v9, s26, v11
            """)
    a(f"""
    v_lshlrev_b32 v10, 3, v0           ; tid*8
    ds_write_b64 v10, v[8:9]
    s_waitcnt lgkmcnt(0)
    s_barrier
    s_cmp_lg_u32 s22, 0
    s_cbranch_scc1 {Lend}
    v_lshlrev_b32 v10, 3, v1
    """)
    for w in range(1, 9):
        a(f"ds_read_b64 v[{10 + 2 * w}:{11 + 2 * w}], v10 offset:{w * 512}")
    a("s_waitcnt lgkmcnt(0)")
    for w in range(1, 9):
        a(f"""
        v_add_f32 v8, v8, v{10 + 2 * w}
        v_add_f32 v9, v9, v{11 + 2 * w}
        """)
    round_bf16_pair(a, 8, 9, 6)
    a(f"""
    s_lshl_b32 s23, s2, 9
    v_add_u32 v10, s23, v10
    buffer_store_dwordx2 v[8:9], v10, s[16:19], 0 offen
    s_branch {Lend}
    """)
    a.label(Lz)
    srd_off(a, 8, 4, WS_MB1, WS_ZERO_BYTES)
    a(f"""
    s_sub_u32 s22, s2, {MOD_WGS}
    s_lshl_b32 s22, s22, 14
    v_cmp_gt_u32 vcc, 512, v0
    s_and_saveexec_b64 s[24:25], vcc
    s_cbranch_execz {Lend}
    v_lshlrev_b32 v1, 4, v0
    v_mov_b32 v4, 0
    v_mov_b32 v5, 0
    v_mov_b32 v6, 0
    v_mov_b32 v7, 0
    buffer_store_dwordx4 v[4:7], v1, s[8:11], s22 offen
    s_add_u32 s22, s22, 8192
    buffer_store_dwordx4 v[4:7], v1, s[8:11], s22 offen
    """)
    a.label(Lend)
    a("s_endpgm")
    return kernel_desc(name, 40, 40)


def k_ln(a, name, src, dst_off, mod_shift, mod_scale):
    kernel_header(a, name)
    Lend = a.newlabel("end")
    a(f"""
    s_load_dwordx2 s[4:5], s[0:1], {KA_WS}
    """)
    if src[0] == 'arg':
        a(f"s_load_dwordx2 s[6:7], s[0:1], {src[1]}")
    a(f"""
    s_cmp_ge_u32 s2, 512
    s_cbranch_scc1 {Lend}
    s_waitcnt lgkmcnt(0)
    """)
    if src[0] == 'arg':
        srd(a, 8, 6, XBYTES)
    else:
        srd_off(a, 8, 4, src[1], XBYTES)
    srd_off(a, 12, 4, dst_off, XBYTES)
    srd_off(a, 16, 4, WS_MOD, 3456 * 4)
    a(f"""
    v_and_b32 v1, 63, v0
    v_lshrrev_b32 v2, 6, v0
    s_nop 0
    v_readfirstlane_b32 s20, v2
    s_lshl_b32 s21, s2, 2
    s_add_u32 s21, s21, s20            ; row
    s_mul_i32 s21, s21, 1152
    v_lshlrev_b32 v3, 4, v1            ; lane*16
    v_lshlrev_b32 v2, 5, v1
    buffer_load_dwordx4 v[4:7], v3, s[8:11], s21 offen
    buffer_load_dwordx4 v[40:43], v2, s[16:19], 0 offen offset:{mod_scale * 2304 % 4096}
    """)
    a.lines.pop()
    a(f"""
    s_mov_b32 s22, {mod_scale * 2304}
    s_mov_b32 s23, {mod_shift * 2304}
    buffer_load_dwordx4 v[40:43], v2, s[16:19], s22 offen
    buffer_load_dwordx4 v[44:47], v2, s[16:19], s22 offen offset:16
    buffer_load_dwordx4 v[48:51], v2, s[16:19], s23 offen
    buffer_load_dwordx4 v[52:55], v2, s[16:19], s23 offen offset:16
    v_mov_b32 v8, 0
    v_mov_b32 v9, 0
    v_mov_b32 v10, 0
    v_mov_b32 v11, 0
    v_cmp_gt_u32 vcc, 8, v1
    s_and_saveexec_b64 s[24:25], vcc
    buffer_load_dwordx4 v[8:11], v3, s[8:11], s21 offen offset:1024
    buffer_load_dwordx4 v[56:59], v2, s[16:19], s22 offen offset:2048
    buffer_load_dwordx4 v[60:63], v2, s[16:19], s22 offen offset:2064
    buffer_load_dwordx4 v[64:67], v2, s[16:19], s23 offen offset:2048
    buffer_load_dwordx4 v[68:71], v2, s[16:19], s23 offen offset:2064
    s_mov_b64 exec, s[24:25]
    s_waitcnt vmcnt(0)
    """)
    for i in range(8):
        a(f"""
        v_lshlrev_b32 v{16 + 2 * i}, 16, v{4 + i}
        v_and_b32 v{17 + 2 * i}, 0xffff0000, v{4 + i}
        """)
    a("v_add_f32 v32, v16, v17")
    for i in range(18, 32):
        a(f"v_add_f32 v32, v32, v{i}")
    wave_sum(a, 32, 33, 26)
    a(f"""
    v_mov_b32 v33, 0x3ae38e39          ; 1/576
    v_mul_f32 v34, s26, v33            ; mean (f32)
    v_mov_b32 v32, 0
    """)
    for i in range(16, 24):
        a(f"""
        v_sub_f32 v33, v{i}, v34
        v_fmac_f32 v32, v33, v33
        """)
    a("s_and_saveexec_b64 s[24:25], vcc")
    for i in range(24, 32):
        a(f"""
        v_sub_f32 v33, v{i}, v34
        v_fmac_f32 v32, v33, v33
        """)
    a("s_mov_b64 exec, s[24:25]")
    wave_sum(a, 32, 33, 26)
    a(f"""
    v_mov_b32 v33, 0x3ae38e39
    v_mul_f32 v35, s26, v33            ; var
    """)
    round_bf16_pair(a, 34, 35, 33)
    a("v_add_f32 v35, 0x3727c5ac, v35     ; +1e-5")
    round_bf16(a, 35, 33)
    a("""
    v_sqrt_f32 v35, v35
    s_nop 0
    """)
    round_bf16(a, 35, 33)
    a("""
    v_rcp_f32 v35, v35
    s_nop 0
    """)
    for i in range(0, 16, 2):
        x0, x1 = 16 + i, 17 + i
        sc0 = 40 + i if i < 8 else 56 + (i - 8)
        sh0 = 48 + i if i < 8 else 64 + (i - 8)
        a(f"""
        v_sub_f32 v{x0}, v{x0}, v34
        v_sub_f32 v{x1}, v{x1}, v34
        """)
        round_bf16_pair(a, x0, x1, 33)
        a(f"""
        v_mul_f32 v{x0}, v{x0}, v35
        v_mul_f32 v{x1}, v{x1}, v35
        v_add_f32 v{sc0}, 1.0, v{sc0}
        v_add_f32 v{sc0 + 1}, 1.0, v{sc0 + 1}
        """)
        round_bf16_pair(a, x0, x1, 33)
        round_bf16_pair(a, sc0, sc0 + 1, 33)
        a(f"""
        v_mul_f32 v{x0}, v{x0}, v{sc0}
        v_mul_f32 v{x1}, v{x1}, v{sc0 + 1}
        """)
        round_bf16_pair(a, x0, x1, 33)
        a(f"""
        v_add_f32 v{x0}, v{x0}, v{sh0}
        v_add_f32 v{x1}, v{x1}, v{sh0 + 1}
        v_cvt_pk_bf16_f32 v{4 + i // 2}, v{x0}, v{x1}
        """)
    a(f"""
    buffer_store_dwordx4 v[4:7], v3, s[12:15], s21 offen
    s_and_saveexec_b64 s[24:25], vcc
    buffer_store_dwordx4 v[8:11], v3, s[12:15], s21 offen offset:1024
    """)
    a.label(Lend)
    a("s_endpgm")
    return kernel_desc(name, 72, 40)
```

```python
from asmlib import *
from kern_basic import *

SCALE_HEX = 0x3db504f3

L_WO = 0
L_MEM = 147456
MEMS = 1184
L_QK = L_MEM + 8 * MEMS
QKS = 272
L_K = L_QK + 8 * QKS
L_O = L_QK + 16 * QKS
L_END = L_O + 8 * QKS
CHAIN_LDS = L_END

V_TID, V_LANE = 0, 1
V_MEMRD, V_QKW, V_QKR, V_WOB, V_WOF, V_MB1W = 2, 3, 4, 5, 6, 7
KX = 8
VX = 40
LOC = 48
WV0 = 80

S_H = 20; S_W = 21; S_STEP = 22; S_TAG = 23; S_SLOT1 = 24; S_SLOT2 = 25
S_M8 = 26
S_M32 = 28
S_M36 = 30
S_SPIN = 32
S_PERM = 33
S_T0 = 34
SRD_K, SRD_VT, SRD_KM, SRD_VM, SRD_MB1, SRD_MB2, SRD_W = 48, 52, 56, 60, 64, 68, 72
S_SAVE = 76
SPIN_LIMIT = 400000


def wfrag(f):
    return f"a[{4*f}:{4*f+3}]" if f < 64 else f"v[{WV0+4*(f-64)}:{WV0+4*(f-64)+3}]"


def wfrag_half(f, hf):
    if f < 64:
        return f"a[{4*f+2*hf}:{4*f+2*hf+1}]"
    b = WV0 + 4 * (f - 64) + 2 * hf
    return f"v[{b}:{b+1}]"


def chain_prologue_weights(a):
    T = LOC
    a(f"""
    v_lshrrev_b32 v{T}, 4, v0                 ; t>>4
    v_and_b32 v{T+1}, 15, v0                  ; c16
    v_lshlrev_b32 v{T+2}, 13, v{T}
    v_lshl_add_u32 v{T+2}, v{T+1}, 4, v{T+2}
    v_and_b32 v{T+3}, 3, v{T}
    v_lshrrev_b32 v{T+4}, 7, v0
    v_lshl_add_u32 v{T+3}, v{T+4}, 2, v{T+3}  ; f(row)
    v_lshrrev_b32 v{T+4}, 1, v{T+1}
    v_xor_b32 v{T+3}, v{T+3}, v{T+4}
    v_lshlrev_b32 v{T+3}, 5, v{T+3}
    v_and_b32 v{T+4}, 1, v{T+1}
    v_lshl_add_u32 v{T+3}, v{T+4}, 4, v{T+3}
    v_lshl_add_u32 v{T+3}, v{T}, 8, v{T+3}
    v_add_u32 v{T+4}, 65536, v{T+3}
    v_add_u32 v{T+5}, 131072, v{T+3}
    v_lshrrev_b32 v{T+6}, 4, v{V_LANE}        ; g
    v_and_b32 v{T+7}, 15, v{V_LANE}           ; i
    v_lshrrev_b32 v{T+8}, 2, v{T+7}           ; i>>2
    v_lshl_add_u32 v{T+9}, v{T+6}, 3, v{T+8}  ; row
    v_and_b32 v{T+6}, 1, v{T+6}
    v_lshl_add_u32 v{T+8}, v{T+6}, 2, v{T+8}  ; f
    v_and_b32 v{T+7}, 3, v{T+7}
    v_lshlrev_b32 v{T+7}, 3, v{T+7}
    v_lshl_add_u32 v{T+7}, v{T+9}, 8, v{T+7}  ; row*256 + (i&3)*8
    s_lshl_b32 s{S_T0}, s{S_W}, 1             ; 2w
    """)
    for u in range(2):
        a(f"""
        s_add_u32 s{S_T0+1}, s{S_T0}, {u}
        v_xor_b32 v{T+9}, s{S_T0+1}, v{T+8}
        v_lshl_add_u32 v{T+10+3*u}, v{T+9}, 5, v{T+7}
        v_add_u32 v{T+11+3*u}, 65536, v{T+10+3*u}
        v_add_u32 v{T+12+3*u}, 131072, v{T+10+3*u}
        """)
    ST = KX
    for m in range(3):
        srd(a, SRD_W, 8 + 2 * m, 576 * 4096 * 2)
        a(f"s_lshl_b32 s{S_T0+2}, s{S_H}, 8")
        for b in range(4):
            for i in range(9):
                ii = b * 9 + i
                a(f"""
                s_add_u32 s{S_T0+3}, s{S_T0+2}, {ii*131072}
                buffer_load_dwordx4 v[{ST+4*i}:{ST+4*i+3}], v{T+2}, s[{SRD_W}:{SRD_W+3}], s{S_T0+3} offen
                """)
            for i in range(9):
                ii = b * 9 + i
                base = T + 3 + (ii // 16)
                a(f"""
                s_waitcnt vmcnt({8-i})
                ds_write_b128 v{base}, v[{ST+4*i}:{ST+4*i+3}] offset:{(ii % 16)*4096}
                """)
        a("s_waitcnt lgkmcnt(0)\ns_barrier")
        for u in range(2):
            for ks in range(18):
                f = (m * 2 + u) * 18 + ks
                base = T + 10 + 3 * u + (ks // 8)
                off = (ks % 8) * 8192
                a(f"ds_read_b64_tr_b16 {wfrag_half(f,0)}, v{base} offset:{off}")
                a(f"ds_read_b64_tr_b16 {wfrag_half(f,1)}, v{base} offset:{off+1024}")
                if ks % 6 == 5:
                    a("s_waitcnt lgkmcnt(0)")
        a("s_waitcnt lgkmcnt(0)\ns_barrier")
    srd(a, SRD_W, 14, 4096 * 576 * 2)
    a(f"""
    s_mul_i32 s{S_T0+2}, s{S_H}, 147456
    v_lshlrev_b32 v{T+2}, 4, v0
    s_mov_b32 s{S_T0+4}, 58255
    """)
    for b in range(4):
        for i in range(9):
            ii = b * 9 + i
            a(f"""
            s_add_u32 s{S_T0+3}, s{S_T0+2}, {ii*4096}
            buffer_load_dwordx4 v[{ST+4*i}:{ST+4*i+3}], v{T+2}, s[{SRD_W}:{SRD_W+3}], s{S_T0+3} offen
            """)
        for i in range(9):
            ii = b * 9 + i
            a(f"""
            v_add_u32 v{T+3}, {ii*256}, v0                 ; c
            v_mul_lo_u32 v{T+4}, v{T+3}, s{S_T0+4}
            v_lshrrev_b32 v{T+4}, 22, v{T+4}               ; row
            v_mul_u32_u24 v{T+5}, 72, v{T+4}
            v_sub_u32 v{T+3}, v{T+3}, v{T+5}               ; c16
            v_bfe_u32 v{T+5}, v{T+4}, 1, 1
            v_bfe_u32 v{T+6}, v{T+4}, 3, 1
            v_lshl_add_u32 v{T+5}, v{T+6}, 1, v{T+5}       ; f
            v_lshrrev_b32 v{T+6}, 1, v{T+3}
            v_xor_b32 v{T+5}, v{T+5}, v{T+6}
            v_lshlrev_b32 v{T+5}, 5, v{T+5}
            v_and_b32 v{T+3}, 1, v{T+3}
            v_lshl_add_u32 v{T+5}, v{T+3}, 4, v{T+5}
            v_mul_u32_u24 v{T+4}, 1152, v{T+4}
            v_add_u32 v{T+5}, v{T+5}, v{T+4}
            s_waitcnt vmcnt({8-i})
            ds_write_b128 v{T+5}, v[{ST+4*i}:{ST+4*i+3}]
            """)
    a("s_waitcnt lgkmcnt(0)\ns_barrier")


def tag_check(a, regs, vA, vO, retry_label):
    a(f"v_and_b32 v{vA}, v{regs[0]}, v{regs[1]}")
    a(f"v_or_b32 v{vO}, v{regs[0]}, v{regs[1]}")
    rest = regs[2:]
    for i in range(0, len(rest), 2):
        a(f"v_and_b32 v{vA}, v{vA}, v{rest[i]}")
        a(f"v_and_b32 v{vA}, v{vA}, v{rest[i+1]}")
        a(f"v_or3_b32 v{vO}, v{vO}, v{rest[i]}, v{rest[i+1]}")
    a(f"""
    v_xor_b32 v{vA}, s{S_TAG}, v{vA}
    v_xor_b32 v{vO}, s{S_TAG}, v{vO}
    v_or_b32 v{vA}, v{vA}, v{vO}
    v_and_b32 v{vA}, 3, v{vA}
    v_cmp_ne_u32 vcc, 0, v{vA}
    s_nop 1
    s_cbranch_vccnz {retry_label}
    """)


def chain_body(a, Lend_unused=None):
    T = LOC
    a(f"""
    s_load_dwordx2 s[4:5], s[0:1], {KA_WS}
    s_load_dwordx4 s[8:11], s[0:1], {KA_WQ}
    s_load_dwordx4 s[12:15], s[0:1], {KA_WV}
    s_load_dwordx2 s[16:17], s[0:1], {KA_MEM0}
    s_mov_b32 s{S_H}, s2
    v_and_b32 v{V_LANE}, 63, v0
    v_lshrrev_b32 v{T}, 6, v0
    s_nop 0
    v_readfirstlane_b32 s{S_W}, v{T}
    s_mov_b32 s{S_M8}, 0x00ff00ff
    s_mov_b32 s{S_M8+1}, 0x00ff00ff
    s_mov_b32 s{S_M32}, -1
    s_mov_b32 s{S_M32+1}, 0
    s_mov_b32 s{S_M36}, -1
    s_mov_b32 s{S_M36+1}, 15
    s_mov_b32 s{S_PERM}, 0x07060302
    s_waitcnt lgkmcnt(0)
    """)
    srd_off(a, SRD_K, 4, WS_K, 2048 * 4096 * 2)
    srd_off(a, SRD_VT, 4, WS_VT, 2048 * 4096 * 2)
    srd_off(a, SRD_KM, 4, WS_KM, 64 * 32 * 2048)
    srd_off(a, SRD_VM, 4, WS_VM, 64 * 32 * 2048)
    srd_off(a, SRD_MB1, 4, WS_MB1, 0x120000)
    srd_off(a, SRD_MB2, 4, WS_MB2, 0x9000)
    chain_prologue_weights(a)
    a(f"""
    v_and_b32 v{T}, 7, v{V_LANE}              ; l&7
    v_lshrrev_b32 v{T+1}, 4, v{V_LANE}        ; g = l>>4
    v_and_b32 v{T+2}, 15, v{V_LANE}           ; i = l&15
    v_mul_u32_u24 v{V_MEMRD}, {MEMS}, v{T}
    v_lshl_add_u32 v{V_MEMRD}, v{T+1}, 4, v{V_MEMRD}
    v_add_u32 v{V_MEMRD}, {L_MEM}, v{V_MEMRD}
    v_mul_u32_u24 v{V_QKR}, {QKS}, v{T}
    v_lshl_add_u32 v{V_QKR}, v{T+1}, 4, v{V_QKR}
    v_add_u32 v{V_QKR}, {L_QK}, v{V_QKR}
    v_mul_u32_u24 v{V_QKW}, {QKS}, v{T+2}
    v_lshl_add_u32 v{V_QKW}, v{T+1}, 3, v{V_QKW}
    s_lshl_b32 s{S_T0}, s{S_W}, 6
    s_add_u32 s{S_T0}, s{S_T0}, {L_QK}
    v_add_u32 v{V_QKW}, s{S_T0}, v{V_QKW}
    v_lshrrev_b32 v{T+3}, 2, v{T+2}
    v_lshl_add_u32 v{T+3}, v{T+1}, 3, v{T+3}
    v_mul_u32_u24 v{V_WOB}, 1152, v{T+3}
    v_and_b32 v{T+3}, 3, v{T+2}
    v_lshl_add_u32 v{V_WOB}, v{T+3}, 3, v{V_WOB}
    v_lshrrev_b32 v{T+3}, 3, v{T+2}
    v_and_b32 v{T+4}, 1, v{T+1}
    v_lshl_add_u32 v{V_WOF}, v{T+4}, 1, v{T+3}
    v_lshl_add_u32 v{T+3}, v{T+2}, 2, s{S_W}
    v_mul_u32_u24 v{V_MB1W}, 18432, v{T+3}
    v_lshl_add_u32 v{V_MB1W}, v{T+1}, 4, v{V_MB1W}
    s_mov_b32 s{S_STEP}, 0
    """)
    srd(a, SRD_W, 16, 8 * 1152)
    for i in range(3):
        a(f"""
        v_add_u32 v{T}, {i*256}, v0
        s_mov_b32 s{S_T0}, 58255
        v_mul_lo_u32 v{T+1}, v{T}, s{S_T0}
        v_lshrrev_b32 v{T+1}, 22, v{T+1}              ; row
        v_mul_u32_u24 v{T+2}, 72, v{T+1}
        v_sub_u32 v{T+2}, v{T}, v{T+2}
        v_mul_u32_u24 v{T+1}, {MEMS}, v{T+1}
        v_lshl_add_u32 v{T+1}, v{T+2}, 4, v{T+1}
        v_add_u32 v{T+1}, {L_MEM}, v{T+1}
        v_lshlrev_b32 v{T+2}, 4, v{T}
        v_cmp_gt_u32 vcc, 576, v{T}
        s_and_saveexec_b64 s[{S_SAVE}:{S_SAVE+1}], vcc
        buffer_load_dwordx4 v[{T+4}:{T+7}], v{T+2}, s[{SRD_W}:{SRD_W+3}], 0 offen
        s_waitcnt vmcnt(0)
        ds_write_b128 v{T+1}, v[{T+4}:{T+7}]
        s_mov_b64 exec, s[{S_SAVE}:{S_SAVE+1}]
        """)
    Lstep = a.newlabel("step")
    Ldone = a.newlabel("chain_done")
    def prefetch():
        a(f"""
        v_and_b32 v{T}, 15, v{V_LANE}
        v_lshrrev_b32 v{T+1}, 4, v{V_LANE}
        v_lshlrev_b32 v{T+2}, 13, v{T}
        v_lshl_add_u32 v{T+2}, v{T+1}, 4, v{T+2}
        s_lshl_b32 s{S_T0}, s{S_STEP}, 18
        s_lshl_b32 s{S_T0+1}, s{S_H}, 8
        s_add_u32 s{S_T0}, s{S_T0}, s{S_T0+1}
        s_add_u32 s{S_T0+1}, s{S_T0}, 131072
        v_lshlrev_b32 v{T+3}, 6, v{T}
        v_lshl_add_u32 v{T+3}, v{T+1}, 3, v{T+3}
        s_lshl_b32 s{S_T0+2}, s{S_W}, 11
        v_add_u32 v{T+3}, s{S_T0+2}, v{T+3}
        s_lshl_b32 s{S_T0+2}, s{S_STEP}, 5
        s_add_u32 s{S_T0+2}, s{S_T0+2}, s{S_H}
        s_lshl_b32 s{S_T0+2}, s{S_T0+2}, 13
        """)
        for x in range(2):
            for ks in range(4):
                r = KX + (x * 4 + ks) * 4
                a(f"buffer_load_dwordx4 v[{r}:{r+3}], v{T+2}, s[{SRD_K}:{SRD_K+3}], s{S_T0+x} offen offset:{ks*64}")
        for u in range(2):
            for x in range(2):
                r = VX + (u * 2 + x) * 2
                a(f"buffer_load_dwordx2 v[{r}:{r+1}], v{T+3}, s[{SRD_VT}:{SRD_VT+3}], s{S_T0+2} offen offset:{u*1024+x*32}")
    prefetch()
    a("s_waitcnt lgkmcnt(0)\ns_barrier")
    a.label(Lstep)
    ACCQ = T
    AF = T + 16
    for r in range(16):
        a(f"v_mov_b32 v{ACCQ+r}, 0")
    for ks in range(2):
        a(f"ds_read_b128 v[{AF+4*ks}:{AF+4*ks+3}], v{V_MEMRD} offset:{ks*64}")
    for ks in range(18):
        if ks + 2 < 18:
            b = AF + 4 * ((ks + 2) % 3)
            a(f"ds_read_b128 v[{b}:{b+3}], v{V_MEMRD} offset:{(ks+2)*64}")
            a("s_waitcnt lgkmcnt(2)")
        elif ks + 1 < 18:
            a("s_waitcnt lgkmcnt(1)")
        else:
            a("s_waitcnt lgkmcnt(0)")
        b = AF + 4 * (ks % 3)
        for Tt in range(4):
            acc = ACCQ + 4 * Tt
            a(f"v_mfma_f32_16x16x32_bf16 v[{acc}:{acc+3}], {wfrag(Tt*18+ks)}, v[{b}:{b+3}], v[{acc}:{acc+3}]")
    a(f"""
    v_and_b32 v{AF}, 15, v{V_LANE}
    v_lshrrev_b32 v{AF+1}, 4, v{V_LANE}
    v_lshlrev_b32 v{AF+2}, 8, v{AF}
    v_lshl_add_u32 v{AF+2}, v{AF+1}, 3, v{AF+2}
    s_lshl_b32 s{S_T0}, s{S_W}, 6
    v_add_u32 v{AF+2}, s{S_T0}, v{AF+2}
    s_lshl_b32 s{S_T0+3}, s{S_STEP}, 5
    s_add_u32 s{S_T0+3}, s{S_T0+3}, s{S_H}
    s_lshl_b32 s{S_T0+3}, s{S_T0+3}, 11
    s_nop 3
    s_mov_b64 exec, s[{S_M8}:{S_M8+1}]
    """)
    for Tt in range(4):
        acc = ACCQ + 4 * Tt
        off = (Tt >> 1) * 8 * QKS + (Tt & 1) * 32
        a(f"""
        v_cvt_pk_bf16_f32 v{acc}, v{acc}, v{acc+1}
        v_cvt_pk_bf16_f32 v{acc+1}, v{acc+2}, v{acc+3}
        ds_write_b64 v{V_QKW}, v[{acc}:{acc+1}] offset:{off}
        """)
        if Tt >= 2:
            a(f"buffer_store_dwordx2 v[{acc}:{acc+1}], v{AF+2}, s[{SRD_KM}:{SRD_KM+3}], s{S_T0+3} offen offset:{(Tt&1)*32}")
    a("""
    s_mov_b64 exec, -1
    s_waitcnt lgkmcnt(0)
    s_barrier
    """)
    ACCV = T
    for r in range(8):
        a(f"v_mov_b32 v{ACCV+r}, 0")
    for ks in range(2):
        a(f"ds_read_b128 v[{AF+4*ks}:{AF+4*ks+3}], v{V_MEMRD} offset:{ks*64}")
    for ks in range(18):
        if ks + 2 < 18:
            b = AF + 4 * ((ks + 2) % 3)
            a(f"ds_read_b128 v[{b}:{b+3}], v{V_MEMRD} offset:{(ks+2)*64}")
            a("s_waitcnt lgkmcnt(2)")
        elif ks + 1 < 18:
            a("s_waitcnt lgkmcnt(1)")
        else:
            a("s_waitcnt lgkmcnt(0)")
        b = AF + 4 * (ks % 3)
        for u in range(2):
            acc = ACCV + 4 * u
            a(f"v_mfma_f32_16x16x32_bf16 v[{acc}:{acc+3}], v[{b}:{b+3}], {wfrag((4+u)*18+ks)}, v[{acc}:{acc+3}]")
    VM = T + 28
    a(f"""
    v_and_b32 v{AF}, 15, v{V_LANE}
    v_lshrrev_b32 v{AF+1}, 4, v{V_LANE}
    v_lshlrev_b32 v{AF+2}, 4, v{AF}
    v_lshl_add_u32 v{AF+2}, v{AF+1}, 3, v{AF+2}
    s_lshl_b32 s{S_T0}, s{S_W}, 9
    v_add_u32 v{AF+2}, s{S_T0}, v{AF+2}
    s_nop 3
    """)
    for u in range(2):
        acc = ACCV + 4 * u
        a(f"""
        v_cvt_pk_bf16_f32 v{VM+2*u}, v{acc}, v{acc+1}
        v_cvt_pk_bf16_f32 v{VM+2*u+1}, v{acc+2}, v{acc+3}
        """)
    a(f"s_mov_b64 exec, s[{S_M32}:{S_M32+1}]")
    for u in range(2):
        a(f"buffer_store_dwordx2 v[{VM+2*u}:{VM+2*u+1}], v{AF+2}, s[{SRD_VM}:{SRD_VM+3}], s{S_T0+3} offen offset:{u*256}")
    a("s_mov_b64 exec, -1")
    SC = T
    FQ = T + 12
    for r in range(12):
        a(f"v_mov_b32 v{SC+r}, 0")
    for half in range(2):
        for j in range(2):
            ks = half * 2 + j
            a(f"ds_read_b128 v[{FQ+8*j}:{FQ+8*j+3}], v{V_QKR} offset:{ks*64}")
            a(f"ds_read_b128 v[{FQ+8*j+4}:{FQ+8*j+7}], v{V_QKR} offset:{8*QKS + ks*64}")
        if half == 0:
            a("s_waitcnt vmcnt(2)")
        for j in range(2):
            ks = half * 2 + j
            a(f"s_waitcnt lgkmcnt({2 - 2*j})")
            q = f"v[{FQ+8*j}:{FQ+8*j+3}]"
            a(f"v_mfma_f32_16x16x32_bf16 v[{SC}:{SC+3}], v[{FQ+8*j+4}:{FQ+8*j+7}], {q}, v[{SC}:{SC+3}]")
            for x in range(2):
                r = KX + (x * 4 + ks) * 4
                a(f"v_mfma_f32_16x16x32_bf16 v[{SC+4+4*x}:{SC+7+4*x}], v[{r}:{r+3}], {q}, v[{SC+4+4*x}:{SC+7+4*x}]")
        if half == 0:
            a("s_nop 3")
    a("s_nop 7")
    t0 = FQ
    a(f"s_mov_b32 s{S_T0}, {SCALE_HEX}")
    for r in range(0, 12, 2):
        round_bf16_pair(a, SC + r, SC + r + 1, t0)
        a(f"""
        v_mul_f32 v{SC+r}, s{S_T0}, v{SC+r}
        v_mul_f32 v{SC+r+1}, s{S_T0}, v{SC+r+1}
        """)
        round_bf16_pair(a, SC + r, SC + r + 1, t0)
    a(f"""
    s_mov_b64 exec, s[{S_M32}:{S_M32+1}]
    s_not_b64 exec, exec
    """)
    for r in range(4):
        a(f"v_mov_b32 v{SC+r}, 0xce6e6b28")
    a("s_mov_b64 exec, -1")
    a(f"v_max3_f32 v{t0}, v{SC}, v{SC+1}, v{SC+2}")
    for r in range(3, 11, 2):
        a(f"v_max3_f32 v{t0}, v{t0}, v{SC+r}, v{SC+r+1}")
    a(f"v_max_f32 v{t0}, v{t0}, v{SC+11}")

    def xreduce(v, op):
        a(f"""
        v_mov_b32 v{v+1}, v{v}
        s_nop 1
        v_permlane16_swap_b32 v{v}, v{v+1}
        s_nop 1
        {op} v{v}, v{v}, v{v+1}
        v_mov_b32 v{v+1}, v{v}
        s_nop 1
        v_permlane32_swap_b32 v{v}, v{v+1}
        s_nop 1
        {op} v{v}, v{v}, v{v+1}
        """)
    xreduce(t0, "v_max_f32")
    a(f"""
    s_mov_b32 s{S_T0}, 0x3fb8aa3b
    v_mul_f32 v{t0}, s{S_T0}, v{t0}
    v_mov_b32 v{t0+2}, 0
    """)
    for r in range(12):
        a(f"""
        v_fma_f32 v{SC+r}, v{SC+r}, s{S_T0}, -v{t0}
        v_exp_f32 v{SC+r}, v{SC+r}
        s_nop 0
        v_add_f32 v{t0+2}, v{t0+2}, v{SC+r}
        """)
    xreduce(t0 + 2, "v_add_f32")
    a(f"""
    v_rcp_f32 v{t0+2}, v{t0+2}
    s_nop 0
    """)
    PP = FQ + 4
    for r in range(0, 12, 2):
        a(f"""
        v_mul_f32 v{SC+r}, v{SC+r}, v{t0+2}
        v_mul_f32 v{SC+r+1}, v{SC+r+1}, v{t0+2}
        v_cvt_pk_bf16_f32 v{PP+r//2}, v{SC+r}, v{SC+r+1}
        """)
    OA = SC
    for r in range(8):
        a(f"v_mov_b32 v{OA+r}, 0")
    a("s_nop 1")
    for u in range(2):
        o = OA + 4 * u
        a(f"v_mfma_f32_16x16x16_bf16 v[{o}:{o+3}], v[{VM+2*u}:{VM+2*u+1}], v[{PP}:{PP+1}], v[{o}:{o+3}]")
        for x in range(2):
            r = VX + (u * 2 + x) * 2
            a(f"v_mfma_f32_16x16x16_bf16 v[{o}:{o+3}], v[{r}:{r+1}], v[{PP+2+2*x}:{PP+3+2*x}], v[{o}:{o+3}]")
    a(f"""
    s_cmp_eq_u32 s{S_STEP}, 63
    s_cbranch_scc1 {Ldone}
    s_nop 7
    s_mov_b64 exec, s[{S_M8}:{S_M8+1}]
    """)
    for u in range(2):
        o = OA + 4 * u
        a(f"""
        v_cvt_pk_bf16_f32 v{o}, v{o}, v{o+1}
        v_cvt_pk_bf16_f32 v{o+1}, v{o+2}, v{o+3}
        ds_write_b64 v{V_QKW}, v[{o}:{o+1}] offset:{L_O - L_QK + u*32}
        """)
    a(f"""
    s_mov_b64 exec, -1
    s_waitcnt lgkmcnt(0)
    s_barrier
    s_and_b32 s{S_T0}, s{S_STEP}, 1
    s_mul_i32 s{S_SLOT1}, s{S_T0}, 0x90000
    s_mul_i32 s{S_SLOT2}, s{S_T0}, 18432
    s_lshr_b32 s{S_TAG}, s{S_STEP}, 1
    s_and_b32 s{S_TAG}, s{S_TAG}, 1
    s_add_u32 s{S_TAG}, s{S_TAG}, 1
    s_mul_i32 s{S_T0+1}, s{S_H}, 576
    s_add_u32 s{S_T0+1}, s{S_T0+1}, s{S_SLOT1}
    s_mul_i32 s{S_T0+2}, s{S_W}, 9
    """)
    OF = T
    WA = T + 16
    WF = KX
    for ks in range(4):
        a(f"ds_read_b128 v[{OF+4*ks}:{OF+4*ks+3}], v{V_QKR} offset:{L_O - L_QK + ks*64}")

    def wo_reads(t, p):
        a(f"""
        s_add_u32 s{S_T0+3}, s{S_T0+2}, {t}
        v_xor_b32 v{WA+p}, s{S_T0+3}, v{V_WOF}
        v_lshl_add_u32 v{WA+p}, v{WA+p}, 5, v{V_WOB}
        v_add_u32 v{WA+2+p}, {2*32*1152}, v{WA+p}
        """)
        for ks in range(4):
            r = WF + p * 16 + 4 * ks
            ad = WA + p + 2 * (ks // 2)
            a(f"ds_read_b64_tr_b16 v[{r}:{r+1}], v{ad} offset:{(ks%2)*32*1152}")
            a(f"ds_read_b64_tr_b16 v[{r+2}:{r+3}], v{ad} offset:{(ks%2)*32*1152 + 4*1152}")
    wo_reads(0, 0)
    for t in range(9):
        p = t & 1
        acc = WA + 4 + 4 * p
        if t + 1 < 9:
            wo_reads(t + 1, p ^ 1)
            a("s_waitcnt lgkmcnt(8)")
        else:
            a("s_waitcnt lgkmcnt(0)")
        for ks in range(4):
            r = WF + p * 16 + 4 * ks
            c = "0" if ks == 0 else f"v[{acc}:{acc+3}]"
            a(f"v_mfma_f32_16x16x32_bf16 v[{acc}:{acc+3}], v[{r}:{r+3}], v[{OF+4*ks}:{OF+4*ks+3}], {c}")
        if t > 0:
            pa = WA + 4 + 4 * (p ^ 1)
            for r in range(4):
                a(f"v_bfi_b32 v{pa+r}, 3, s{S_TAG}, v{pa+r}")
            a(f"""
            s_mov_b64 exec, s[{S_M8}:{S_M8+1}]
            buffer_store_dwordx4 v[{pa}:{pa+3}], v{V_MB1W}, s[{SRD_MB1}:{SRD_MB1+3}], s{S_T0+1} offen offset:{(t-1)*64} sc1
            s_mov_b64 exec, -1
            s_nop 0
            """)
    pa = WA + 4 + 4 * (8 & 1)
    a("s_nop 7")
    for r in range(4):
        a(f"v_bfi_b32 v{pa+r}, 3, s{S_TAG}, v{pa+r}")
    a(f"""
    s_mov_b64 exec, s[{S_M8}:{S_M8+1}]
    buffer_store_dwordx4 v[{pa}:{pa+3}], v{V_MB1W}, s[{SRD_MB1}:{SRD_MB1+3}], s{S_T0+1} offen offset:{8*64} sc1
    s_mov_b64 exec, -1
    """)
    Lp1 = a.newlabel("poll1")
    Lp1x = a.newlabel("poll1x")
    RD = KX
    a(f"""
    v_lshlrev_b32 v{T}, 4, v{V_LANE}
    s_mul_i32 s{S_T0+1}, s{S_H}, 18432
    s_mul_i32 s{S_T0+2}, s{S_W}, 4608
    s_add_u32 s{S_T0+1}, s{S_T0+1}, s{S_T0+2}
    s_add_u32 s{S_T0+1}, s{S_T0+1}, s{S_SLOT1}
    s_mov_b32 s{S_SPIN}, 0
    s_mov_b64 exec, s[{S_M36}:{S_M36+1}]
    """)
    a.label(Lp1)
    a(f"""
    s_add_u32 s{S_SPIN}, s{S_SPIN}, 1
    s_cmp_gt_u32 s{S_SPIN}, {SPIN_LIMIT}
    s_cbranch_scc1 {Lp1x}
    """)
    for i in range(8):
        a(f"buffer_load_dwordx4 v[{RD+4*i}:{RD+4*i+3}], v{T}, s[{SRD_MB1}:{SRD_MB1+3}], s{S_T0+1} offen offset:{i*576} sc1")
    a("s_waitcnt vmcnt(0)")
    tag_check(a, [RD + i for i in range(32)], T + 1, T + 2, Lp1)
    a.label(Lp1x)
    for i in range(1, 8):
        for d in range(4):
            a(f"v_add_f32 v{RD+d}, v{RD+d}, v{RD+4*i+d}")
    a(f"""
    s_mul_i32 s{S_T0+2}, s{S_W}, 576
    s_add_u32 s{S_T0+2}, s{S_T0+2}, {L_QK}
    v_add_u32 v{T+1}, s{S_T0+2}, v{T}
    ds_write_b128 v{T+1}, v[{RD}:{RD+3}]
    s_mov_b64 exec, -1
    s_waitcnt lgkmcnt(0)
    s_barrier
    """)
    Lnopub = a.newlabel("nopub")
    a(f"""
    s_cmp_lg_u32 s{S_W}, 0
    s_cbranch_scc1 {Lnopub}
    s_mov_b64 exec, s[{S_M36}:{S_M36+1}]
    v_add_u32 v{T+1}, {L_QK}, v{T}
    """)
    for w in range(1, 4):
        a(f"ds_read_b128 v[{RD+4*w}:{RD+4*w+3}], v{T+1} offset:{w*576}")
    a("s_waitcnt lgkmcnt(0)")
    for w in range(1, 4):
        for d in range(4):
            a(f"v_add_f32 v{RD+d}, v{RD+d}, v{RD+4*w+d}")
    for d in range(0, 4, 2):
        a(f"""
        v_cvt_pk_bf16_f32 v{T+2}, v{RD+d}, v{RD+d+1}
        v_lshlrev_b32 v{RD+d}, 16, v{T+2}
        v_and_b32 v{RD+d+1}, 0xffff0000, v{T+2}
        v_or_b32 v{RD+d}, s{S_TAG}, v{RD+d}
        v_or_b32 v{RD+d+1}, s{S_TAG}, v{RD+d+1}
        """)
    a(f"""
    s_mul_i32 s{S_T0+1}, s{S_H}, 576
    s_add_u32 s{S_T0+1}, s{S_T0+1}, s{S_SLOT2}
    buffer_store_dwordx4 v[{RD}:{RD+3}], v{T}, s[{SRD_MB2}:{SRD_MB2+3}], s{S_T0+1} offen sc1
    s_mov_b64 exec, -1
    s_nop 1
    """)
    a.label(Lnopub)
    a(f"s_add_u32 s{S_STEP}, s{S_STEP}, 1")
    prefetch()
    G = T + 4
    GA = T + 24
    a(f"""
    v_lshlrev_b32 v{T}, 4, v0
    s_mov_b32 s{S_T0+8}, 3641
    """)
    for i in range(5):
        a(f"""
        s_add_u32 s{S_T0+i}, s{S_SLOT2}, {i*4096}
        v_add_u32 v{T+1}, {i*256}, v0
        v_mul_lo_u32 v{T+2}, v{T+1}, s{S_T0+8}
        v_lshrrev_b32 v{T+2}, 19, v{T+2}
        v_mul_u32_u24 v{T+3}, 144, v{T+2}
        v_sub_u32 v{T+1}, v{T+1}, v{T+3}
        v_mul_u32_u24 v{T+2}, {MEMS}, v{T+2}
        v_lshl_add_u32 v{GA+i}, v{T+1}, 3, v{T+2}
        v_add_u32 v{GA+i}, {L_MEM}, v{GA+i}
        """)
    a(f"""
    s_cmp_ge_u32 s{S_W}, 2
    s_cselect_b32 s{S_T0+4}, s{S_T0}, s{S_T0+4}
    s_mov_b32 s{S_SPIN}, 0
    """)
    Lp2 = a.newlabel("poll2")
    Lp2x = a.newlabel("poll2x")
    a.label(Lp2)
    a(f"""
    s_add_u32 s{S_SPIN}, s{S_SPIN}, 1
    s_cmp_gt_u32 s{S_SPIN}, {SPIN_LIMIT}
    s_cbranch_scc1 {Lp2x}
    """)
    for i in range(5):
        a(f"buffer_load_dwordx4 v[{G+4*i}:{G+4*i+3}], v{T}, s[{SRD_MB2}:{SRD_MB2+3}], s{S_T0+i} offen sc1")
    a("s_waitcnt vmcnt(0)")
    tag_check(a, [G + i for i in range(20)], T + 1, T + 2, Lp2)
    a.label(Lp2x)
    Lskip4 = a.newlabel("skip4")
    for i in range(5):
        if i == 4:
            a(f"""
            s_cmp_ge_u32 s{S_W}, 2
            s_cbranch_scc1 {Lskip4}
            """)
        g = G + 4 * i
        a(f"""
        v_perm_b32 v{g}, v{g+1}, v{g}, s{S_PERM}
        v_perm_b32 v{g+1}, v{g+3}, v{g+2}, s{S_PERM}
        ds_write_b64 v{GA+i}, v[{g}:{g+1}]
        """)
    a.label(Lskip4)
    a(f"""
    s_waitcnt lgkmcnt(0)
    s_barrier
    s_branch {Lstep}
    """)
    a.label(Ldone)


def k_chain(a, name):
    kernel_header(a, name)
    Lend = a.newlabel("end")
    a(f"""
    s_cmp_ge_u32 s2, 32
    s_cbranch_scc1 {Lend}
    """)
    chain_body(a)
    a.label(Lend)
    a("s_endpgm")
    return kernel_desc(name, 512, 96, accum=256)
```

```python
from asmlib import *
from kern_basic import *

ACC = 0
FR = 64
STA = 96
STB = 112
V_AG = 128
V_BG = 129
V_AW = 130
V_BW = 131
V_AR = 132
V_BR = 136
V_T = 140
V_TID = 168
V_LANE = 169
NVGPR_GEMM = 176
S_SRDA, S_SRDB, S_SRDC = 8, 12, 16
S_OFFA, S_OFFB = 20, 24
S_CNT = 28
S_WAVE = 29
S_M0 = 30
S_N0 = 31


def gemm_addr_setup(a, lda, ldb, ffn1=False):
    a(f"""
    v_mov_b32 v{V_TID}, v0
    v_and_b32 v{V_LANE}, 63, v0
    v_lshrrev_b32 v{V_T}, 3, v0
    v_and_b32 v{V_T+1}, 7, v0
    s_mov_b32 s40, {lda}
    v_mul_lo_u32 v{V_AG}, v{V_T}, s40
    v_lshl_add_u32 v{V_AG}, v{V_T+1}, 4, v{V_AG}
    v_lshrrev_b32 v{V_T+2}, 4, v0
    v_and_b32 v{V_T+2}, 7, v{V_T+2}
    v_xor_b32 v{V_T+2}, v{V_T+2}, v{V_T+1}
    v_lshlrev_b32 v{V_T+2}, 4, v{V_T+2}
    v_lshl_add_u32 v{V_AW}, v{V_T}, 7, v{V_T+2}
    """)
    if not ffn1:
        a(f"""
        v_lshrrev_b32 v{V_T}, 4, v0
        v_and_b32 v{V_T+1}, 15, v0
        s_mov_b32 s40, {ldb}
        v_mul_lo_u32 v{V_BG}, v{V_T}, s40
        v_lshl_add_u32 v{V_BG}, v{V_T+1}, 4, v{V_BG}
        """)
    else:
        a(f"""
        v_and_b32 v{V_T+3}, 127, v0
        v_lshrrev_b32 v{V_T}, 3, v{V_T+3}
        v_and_b32 v{V_T+1}, 7, v0
        s_mov_b32 s40, {ldb}
        v_mul_lo_u32 v{V_BG}, v{V_T}, s40
        v_lshl_add_u32 v{V_BG}, v{V_T+1}, 4, v{V_BG}
        v_lshrrev_b32 v{V_T+2}, 2, v{V_T+1}
        v_lshlrev_b32 v{V_T+2}, 3, v{V_T+2}
        v_and_b32 v{V_T+1}, 3, v{V_T+1}
        v_add_u32 v{V_T+1}, v{V_T+1}, v{V_T+2}
        v_lshrrev_b32 v{V_T+2}, 7, v0
        v_lshl_add_u32 v{V_T+1}, v{V_T+2}, 2, v{V_T+1}
        """)
    a(f"""
    v_lshrrev_b32 v{V_T+2}, 2, v{V_T+1}
    v_and_b32 v{V_T+3}, 3, v{V_T}
    v_xor_b32 v{V_T+2}, v{V_T+2}, v{V_T+3}
    v_lshlrev_b32 v{V_T+2}, 6, v{V_T+2}
    v_and_b32 v{V_T+3}, 3, v{V_T+1}
    v_lshl_add_u32 v{V_T+2}, v{V_T+3}, 4, v{V_T+2}
    v_lshl_add_u32 v{V_BW}, v{V_T}, 8, v{V_T+2}
    v_add_u32 v{V_BW}, 16384, v{V_BW}
    v_lshrrev_b32 v{V_T}, 7, v0              ; wm
    v_and_b32 v{V_T+1}, 31, v0
    v_lshl_add_u32 v{V_T}, v{V_T}, 6, v{V_T+1}   ; row
    v_lshrrev_b32 v{V_T+1}, 1, v{V_T}
    v_and_b32 v{V_T+1}, 7, v{V_T+1}          ; f(row)
    v_lshrrev_b32 v{V_T+2}, 5, v{V_LANE}     ; l>>5
    """)
    for kk in range(4):
        a(f"""
        v_add_u32 v{V_T+3}, {kk*2}, v{V_T+2}
        v_xor_b32 v{V_T+3}, v{V_T+3}, v{V_T+1}
        v_lshlrev_b32 v{V_T+3}, 4, v{V_T+3}
        v_lshl_add_u32 v{V_AR+kk}, v{V_T}, 7, v{V_T+3}
        """)
    a(f"""
    v_lshrrev_b32 v{V_T}, 4, v{V_LANE}       ; g
    v_and_b32 v{V_T+1}, 15, v{V_LANE}        ; i
    v_lshrrev_b32 v{V_T+2}, 1, v{V_T}
    v_lshlrev_b32 v{V_T+2}, 3, v{V_T+2}
    v_lshrrev_b32 v{V_T+3}, 2, v{V_T+1}      ; i>>2  (= row&3)
    v_add_u32 v{V_T+2}, v{V_T+2}, v{V_T+3}   ; row
    v_and_b32 v{V_T}, 1, v{V_T}
    v_lshlrev_b32 v{V_T}, 5, v{V_T}
    v_and_b32 v{V_T+1}, 3, v{V_T+1}
    v_lshl_add_u32 v{V_T}, v{V_T+1}, 3, v{V_T}
    v_lshl_add_u32 v{V_T}, v{V_T+2}, 8, v{V_T}    ; + row*256
    v_add_u32 v{V_T}, 16384, v{V_T}
    v_lshrrev_b32 v{V_T+1}, 6, v0
    v_and_b32 v{V_T+1}, 1, v{V_T+1}          ; wn
    v_lshlrev_b32 v{V_T+1}, 1, v{V_T+1}
    """)
    for j in range(2):
        a(f"""
        v_add_u32 v{V_T+2}, {j}, v{V_T+1}
        v_xor_b32 v{V_T+2}, v{V_T+2}, v{V_T+3}
        v_lshl_add_u32 v{V_BR+j}, v{V_T+2}, 6, v{V_T}
        """)
    for r in range(64):
        a(f"v_mov_b32 v{ACC+r}, 0")


def gemm_issue_loads(a, lda, ldb):
    for i in range(4):
        a(f"buffer_load_dwordx4 v[{STA+4*i}:{STA+4*i+3}], v{V_AG}, s[{S_SRDA}:{S_SRDA+3}], s{S_OFFA+i} offen")
    for i in range(4):
        a(f"buffer_load_dwordx4 v[{STB+4*i}:{STB+4*i+3}], v{V_BG}, s[{S_SRDB}:{S_SRDB+3}], s{S_OFFB+i} offen")
    for i in range(4):
        a(f"s_add_u32 s{S_OFFA+i}, s{S_OFFA+i}, 128")
    for i in range(4):
        a(f"s_add_u32 s{S_OFFB+i}, s{S_OFFB+i}, {64*ldb}")


def gemm_stage_write(a, buf):
    o = buf * 32768
    a("s_waitcnt vmcnt(4)")
    for i in range(4):
        a(f"ds_write_b128 v{V_AW}, v[{STA+4*i}:{STA+4*i+3}] offset:{o + i*4096}")
    a("s_waitcnt vmcnt(0)")
    for i in range(4):
        a(f"ds_write_b128 v{V_BW}, v[{STB+4*i}:{STB+4*i+3}] offset:{o + i*4096}")


def gemm_frag_reads(a, buf, kk, p):
    o = buf * 32768
    f = FR + p * 16
    a(f"ds_read_b128 v[{f}:{f+3}], v{V_AR+kk} offset:{o}")
    a(f"ds_read_b128 v[{f+4}:{f+7}], v{V_AR+kk} offset:{o+4096}")
    for j in range(2):
        a(f"ds_read_b64_tr_b16 v[{f+8+4*j}:{f+9+4*j}], v{V_BR+j} offset:{o + kk*4096}")
        a(f"ds_read_b64_tr_b16 v[{f+10+4*j}:{f+11+4*j}], v{V_BR+j} offset:{o + kk*4096 + 1024}")


def gemm_mfmas(a, p, swap):
    f = FR + p * 16
    for i in range(2):
        for j in range(2):
            acc = ACC + (i * 2 + j) * 16
            A = f"v[{f+4*i}:{f+4*i+3}]"
            B = f"v[{f+8+4*j}:{f+8+4*j+3}]"
            if swap:
                a(f"v_mfma_f32_32x32x16_bf16 v[{acc}:{acc+15}], {B}, {A}, v[{acc}:{acc+15}]")
            else:
                a(f"v_mfma_f32_32x32x16_bf16 v[{acc}:{acc+15}], {A}, {B}, v[{acc}:{acc+15}]")


def gemm_compute_tile(a, buf, swap):
    gemm_frag_reads(a, buf, 0, 0)
    for kk in range(4):
        if kk < 3:
            gemm_frag_reads(a, buf, kk + 1, (kk + 1) & 1)
            a("s_waitcnt lgkmcnt(6)")
        else:
            a("s_waitcnt lgkmcnt(0)")
        gemm_mfmas(a, kk & 1, swap)


def gemm_mainloop(a, KT, lda, ldb, swap):
    gemm_issue_loads(a, lda, ldb)
    gemm_stage_write(a, 0)
    a("s_waitcnt lgkmcnt(0)\ns_barrier")

    def body(buf):
        gemm_issue_loads(a, lda, ldb)
        gemm_compute_tile(a, buf, swap)
        gemm_stage_write(a, buf ^ 1)
        a("s_waitcnt lgkmcnt(0)\ns_barrier")

    if KT % 2 == 1:
        for kt in range(KT):
            if kt == KT - 1:
                gemm_compute_tile(a, kt & 1, swap)
                a("s_barrier")
            else:
                body(kt & 1)
    else:
        L = a.newlabel("kloop")
        a(f"s_mov_b32 s{S_CNT}, {KT // 2}")
        a.label(L)
        body(0)
        body(1)
        a(f"""
        s_sub_u32 s{S_CNT}, s{S_CNT}, 1
        s_cmp_lg_u32 s{S_CNT}, 0
        s_cbranch_scc1 {L}
        """)
    a("s_nop 7\ns_nop 7")


CST = 272


def gemm_stage_c(a, swap, pre=None):
    a(f"""
    v_lshrrev_b32 v{V_T}, 7, v{V_TID}        ; wm
    v_lshrrev_b32 v{V_T+1}, 6, v{V_TID}
    v_and_b32 v{V_T+1}, 1, v{V_T+1}          ; wn
    v_and_b32 v{V_T+2}, 31, v{V_LANE}
    v_lshrrev_b32 v{V_T+3}, 5, v{V_LANE}
    """)
    maj, mnr = (V_T, V_T + 1) if swap else (V_T + 1, V_T)
    a(f"""
    v_lshl_add_u32 v{V_T+2}, v{maj}, 6, v{V_T+2}
    v_mul_u32_u24 v{V_T+2}, {CST}, v{V_T+2}
    v_lshlrev_b32 v{V_T+4}, 7, v{mnr}
    v_lshl_add_u32 v{V_T+4}, v{V_T+3}, 3, v{V_T+4}   ; + (l>>5)*8
    v_add_u32 v{V_T+2}, v{V_T+2}, v{V_T+4}
    """)
    for i in range(2):
        for j in range(2):
            acc = ACC + (i * 2 + j) * 16
            smaj, smin = (i, j) if swap else (j, i)
            for q in range(4):
                r = acc + 4 * q
                a(f"""
                v_cvt_pk_bf16_f32 v{V_T+6}, v{r}, v{r+1}
                v_cvt_pk_bf16_f32 v{V_T+7}, v{r+2}, v{r+3}
                ds_write_b64 v{V_T+2}, v[{V_T+6}:{V_T+7}] offset:{smaj*32*CST + smin*64 + q*16}
                """)
    a("s_waitcnt lgkmcnt(0)\ns_barrier")


def gemm_readback_addr(a):
    a(f"""
    v_lshrrev_b32 v{V_T+1}, 4, v{V_TID}
    v_and_b32 v{V_T+2}, 15, v{V_TID}
    v_mul_u32_u24 v{V_T}, {CST}, v{V_T+1}
    v_lshl_add_u32 v{V_T}, v{V_T+2}, 4, v{V_T}
    """)


def k_qkv(a, name):
    kernel_header(a, name)
    Lend = a.newlabel("end")
    Lv = a.newlabel("vpath")
    lda, ldb = 1152, 8192
    a(f"""
    s_load_dwordx2 s[4:5], s[0:1], {KA_WS}
    s_load_dwordx4 s[44:47], s[0:1], {KA_WQ}
    s_load_dwordx2 s[48:49], s[0:1], {KA_WV}
    s_cmp_ge_u32 s2, {16*96}
    s_cbranch_scc1 {Lend}
    s_and_b32 s{S_M0}, s2, 15
    s_lshl_b32 s{S_M0}, s{S_M0}, 7          ; m0
    s_lshr_b32 s32, s2, 4                   ; nt 0..95
    s_lshr_b32 s33, s32, 5                  ; matrix
    s_and_b32 s34, s32, 31                  ; head
    s_waitcnt lgkmcnt(0)
    s_cmp_eq_u32 s33, 1
    s_cselect_b32 s6, s46, s44
    s_cselect_b32 s7, s47, s45
    s_cmp_eq_u32 s33, 2
    s_cselect_b32 s6, s48, s6
    s_cselect_b32 s7, s49, s7
    """)
    srd_off(a, S_SRDA, 4, WS_H1, XBYTES)
    srd(a, S_SRDB, 6, 576 * 4096 * 2)
    a(f"""
    s_mul_i32 s35, s{S_M0}, {lda}
    s_lshl_b32 s36, s34, 8
    """)
    for i in range(4):
        a(f"s_add_u32 s{S_OFFA+i}, s35, {i*32*lda}")
        a(f"s_add_u32 s{S_OFFB+i}, s36, {i*16*ldb}")
    gemm_addr_setup(a, lda, ldb)
    a(f"""
    s_cmp_eq_u32 s33, 2
    s_cbranch_scc1 {Lv}
    """)
    gemm_mainloop(a, 9, lda, ldb, True)
    gemm_stage_c(a, True)
    a(f"""
    s_mul_i32 s36, s33, {WS_K - WS_Q}
    s_add_u32 s36, s36, {WS_Q}
    s_add_u32 s50, s4, s36
    s_addc_u32 s51, s5, 0
    """)
    srd(a, S_SRDC, 50, 2048 * 4096 * 2)
    gemm_readback_addr(a)
    a(f"""
    v_lshlrev_b32 v{V_T+3}, 13, v{V_T+1}            ; row*8192
    v_lshl_add_u32 v{V_T+3}, v{V_T+2}, 4, v{V_T+3}  ; +chunk*16
    s_lshl_b32 s36, s{S_M0}, 13
    s_lshl_b32 s37, s34, 8
    s_add_u32 s36, s36, s37
    """)
    for i in range(8):
        a(f"ds_read_b128 v[{64+4*i}:{67+4*i}], v{V_T} offset:{i*16*CST}")
    for i in range(8):
        a(f"""
        s_waitcnt lgkmcnt({7-i})
        buffer_store_dwordx4 v[{64+4*i}:{67+4*i}], v{V_T+3}, s[{S_SRDC}:{S_SRDC+3}], s36 offen
        s_add_u32 s36, s36, {16*8192}
        """)
    a(f"s_branch {Lend}")
    a.label(Lv)
    gemm_mainloop(a, 9, lda, ldb, False)
    gemm_stage_c(a, False)
    srd_off(a, S_SRDC, 4, WS_VT, 2048 * 4096 * 2)
    gemm_readback_addr(a)
    a(f"""
    v_lshrrev_b32 v{V_T+3}, 2, v{V_T+2}
    v_lshlrev_b32 v{V_T+3}, 18, v{V_T+3}            ; (c>>2)*32*128*64
    v_lshl_add_u32 v{V_T+3}, v{V_T+1}, 6, v{V_T+3}  ; + e*64
    v_and_b32 v{V_T+4}, 3, v{V_T+2}
    v_lshl_add_u32 v{V_T+3}, v{V_T+4}, 4, v{V_T+3}
    s_lshr_b32 s36, s{S_M0}, 5
    s_lshl_b32 s36, s36, 18
    s_lshl_b32 s37, s34, 13
    s_add_u32 s36, s36, s37
    """)
    for i in range(8):
        a(f"ds_read_b128 v[{64+4*i}:{67+4*i}], v{V_T} offset:{i*16*CST}")
    for i in range(8):
        a(f"""
        s_waitcnt lgkmcnt({7-i})
        buffer_store_dwordx4 v[{64+4*i}:{67+4*i}], v{V_T+3}, s[{S_SRDC}:{S_SRDC+3}], s36 offen
        s_add_u32 s36, s36, 1024
        """)
    a.label(Lend)
    a("s_endpgm")
    return kernel_desc(name, NVGPR_GEMM, 64)


def k_ffn1(a, name):
    kernel_header(a, name)
    Lend = a.newlabel("end")
    lda, ldb = 1152, 9216
    a(f"""
    s_load_dwordx2 s[4:5], s[0:1], {KA_WS}
    s_load_dwordx4 s[44:47], s[0:1], {KA_WG}
    s_cmp_ge_u32 s2, {16*72}
    s_cbranch_scc1 {Lend}
    s_and_b32 s{S_M0}, s2, 15
    s_lshl_b32 s{S_M0}, s{S_M0}, 7
    s_lshr_b32 s32, s2, 4                   ; nt 0..71
    v_lshrrev_b32 v1, 7, v0
    s_nop 0
    v_readfirstlane_b32 s33, v1
    s_waitcnt lgkmcnt(0)
    s_cmp_eq_u32 s33, 1
    s_cselect_b32 s6, s46, s44
    s_cselect_b32 s7, s47, s45
    """)
    srd_off(a, S_SRDA, 4, WS_H2, XBYTES)
    srd(a, S_SRDB, 6, 576 * 4608 * 2)
    a(f"""
    s_mul_i32 s35, s{S_M0}, {lda}
    s_lshl_b32 s36, s32, 7
    """)
    for i in range(4):
        a(f"s_add_u32 s{S_OFFA+i}, s35, {i*32*lda}")
        a(f"s_add_u32 s{S_OFFB+i}, s36, {i*16*ldb}")
    gemm_addr_setup(a, lda, ldb, ffn1=True)
    gemm_mainloop(a, 9, lda, ldb, True)
    for i in range(2):
        g0 = ACC + (i * 2) * 16
        u0 = ACC + (i * 2 + 1) * 16
        for r in range(0, 16, 2):
            round_bf16_pair(a, g0 + r, g0 + r + 1, V_T)
            round_bf16_pair(a, u0 + r, u0 + r + 1, V_T)
            for e in range(2):
                g = g0 + r + e
                t = V_T + 1 + e
                a(f"""
                v_mul_f32 v{t}, v{g}, v{g}
                v_mov_b32 v{V_T+4}, 0x3d372713
                v_fma_f32 v{t}, v{t}, v{V_T+4}, 1.0
                v_mul_f32 v{t}, v{t}, v{g}
                v_mul_f32 v{t}, 0xc0135761, v{t}
                v_exp_f32 v{t}, v{t}
                s_nop 0
                v_add_f32 v{t}, 1.0, v{t}
                v_rcp_f32 v{t}, v{t}
                s_nop 0
                v_mul_f32 v{g}, v{g}, v{t}
                """)
            round_bf16_pair(a, g0 + r, g0 + r + 1, V_T)
            a(f"""
            v_mul_f32 v{g0+r}, v{g0+r}, v{u0+r}
            v_mul_f32 v{g0+r+1}, v{g0+r+1}, v{u0+r+1}
            """)
    a(f"""
    v_lshrrev_b32 v{V_T}, 7, v{V_TID}
    v_lshrrev_b32 v{V_T+1}, 6, v{V_TID}
    v_and_b32 v{V_T+1}, 1, v{V_T+1}
    v_and_b32 v{V_T+2}, 31, v{V_LANE}
    v_lshrrev_b32 v{V_T+3}, 5, v{V_LANE}
    v_lshl_add_u32 v{V_T+2}, v{V_T}, 6, v{V_T+2}
    v_mul_u32_u24 v{V_T+2}, 144, v{V_T+2}
    v_lshlrev_b32 v{V_T+4}, 6, v{V_T+1}
    v_lshl_add_u32 v{V_T+4}, v{V_T+3}, 3, v{V_T+4}
    v_add_u32 v{V_T+2}, v{V_T+2}, v{V_T+4}
    """)
    for i in range(2):
        acc = ACC + (i * 2) * 16
        for q in range(4):
            r = acc + 4 * q
            a(f"""
            v_cvt_pk_bf16_f32 v{V_T+6}, v{r}, v{r+1}
            v_cvt_pk_bf16_f32 v{V_T+7}, v{r+2}, v{r+3}
            ds_write_b64 v{V_T+2}, v[{V_T+6}:{V_T+7}] offset:{i*32*144 + q*16}
            """)
    a("s_waitcnt lgkmcnt(0)\ns_barrier")
    srd_off(a, S_SRDC, 4, WS_ACT, 2048 * 4608 * 2)
    a(f"""
    v_lshrrev_b32 v{V_T+1}, 3, v{V_TID}
    v_and_b32 v{V_T+2}, 7, v{V_TID}
    v_mul_u32_u24 v{V_T}, 144, v{V_T+1}
    v_lshl_add_u32 v{V_T}, v{V_T+2}, 4, v{V_T}
    v_mul_u32_u24 v{V_T+3}, 9216, v{V_T+1}
    v_lshl_add_u32 v{V_T+3}, v{V_T+2}, 4, v{V_T+3}
    s_mul_i32 s36, s{S_M0}, 9216
    s_lshl_b32 s37, s32, 7
    s_add_u32 s36, s36, s37
    """)
    for i in range(4):
        a(f"ds_read_b128 v[{64+4*i}:{67+4*i}], v{V_T} offset:{i*32*144}")
    for i in range(4):
        a(f"""
        s_waitcnt lgkmcnt({3-i})
        buffer_store_dwordx4 v[{64+4*i}:{67+4*i}], v{V_T+3}, s[{S_SRDC}:{S_SRDC+3}], s36 offen
        s_add_u32 s36, s36, {32*9216}
        """)
    a.label(Lend)
    a("s_endpgm")
    return kernel_desc(name, NVGPR_GEMM, 64)


def k_resgemm(a, name, K, a_off, b_arg, res, out, mod_gate):
    kernel_header(a, name)
    Lend = a.newlabel("end")
    lda, ldb = K * 2, 1152
    a(f"""
    s_load_dwordx2 s[4:5], s[0:1], {KA_WS}
    s_load_dwordx2 s[6:7], s[0:1], {b_arg}
    """)
    if res[0] == 'arg':
        a(f"s_load_dwordx2 s[44:45], s[0:1], {res[1]}")
    if out[0] == 'arg':
        a(f"s_load_dwordx2 s[46:47], s[0:1], {out[1]}")
    a(f"""
    s_cmp_ge_u32 s2, {16*5}
    s_cbranch_scc1 {Lend}
    s_and_b32 s{S_M0}, s2, 15
    s_lshl_b32 s{S_M0}, s{S_M0}, 7
    s_lshr_b32 s32, s2, 4                   ; nt 0..4
    s_waitcnt lgkmcnt(0)
    """)
    srd_off(a, S_SRDA, 4, a_off, 2048 * K * 2)
    srd(a, S_SRDB, 6, K * 1152)
    a(f"""
    s_mul_i32 s35, s{S_M0}, {lda}
    s_lshl_b32 s36, s32, 8
    """)
    for i in range(4):
        a(f"s_add_u32 s{S_OFFA+i}, s35, {i*32*lda}")
        a(f"s_add_u32 s{S_OFFB+i}, s36, {i*16*ldb}")
    gemm_addr_setup(a, lda, ldb)
    gemm_mainloop(a, K // 64, lda, ldb, True)
    gemm_stage_c(a, True)
    if out[0] == 'arg':
        srd(a, S_SRDC, 46, XBYTES)
    else:
        srd_off(a, S_SRDC, 4, out[1], XBYTES)
    if res[0] == 'arg':
        srd(a, 52, 44, XBYTES)
    else:
        srd_off(a, 52, 4, res[1], XBYTES)
    srd_off(a, 56, 4, WS_MOD + mod_gate * 2304, 2304)
    gemm_readback_addr(a)
    a(f"""
    s_lshl_b32 s37, s32, 7
    v_lshl_add_u32 v{V_T+4}, v{V_T+2}, 3, s37       ; col
    v_cmp_gt_u32 vcc, 576, v{V_T+4}
    s_and_saveexec_b64 s[60:61], vcc
    s_cbranch_execz {Lend}
    v_lshlrev_b32 v{V_T+5}, 2, v{V_T+4}
    buffer_load_dwordx4 v[96:99], v{V_T+5}, s[56:59], 0 offen
    buffer_load_dwordx4 v[100:103], v{V_T+5}, s[56:59], 0 offen offset:16
    v_mul_u32_u24 v{V_T+3}, 1152, v{V_T+1}
    v_lshl_add_u32 v{V_T+3}, v{V_T+4}, 1, v{V_T+3}
    s_mul_i32 s36, s{S_M0}, 1152
    """)
    for i in range(8):
        a(f"ds_read_b128 v[{64+4*i}:{67+4*i}], v{V_T} offset:{i*16*CST}")
    a("s_mov_b32 s38, s36")
    for i in range(8):
        a(f"""
        buffer_load_dwordx4 v[{4*i}:{4*i+3}], v{V_T+3}, s[52:55], s38 offen
        s_add_u32 s38, s38, {16*1152}
        """)
    a("s_waitcnt vmcnt(0) lgkmcnt(0)")
    for i in range(8):
        for d in range(4):
            c = 64 + 4 * i + d
            x = 4 * i + d
            a(f"""
            v_lshlrev_b32 v104, 16, v{c}
            v_and_b32 v105, 0xffff0000, v{c}
            v_mul_f32 v104, v104, v{96+2*d}
            v_mul_f32 v105, v105, v{97+2*d}
            v_cvt_pk_bf16_f32 v106, v104, v105
            v_lshlrev_b32 v104, 16, v106
            v_and_b32 v105, 0xffff0000, v106
            v_lshlrev_b32 v106, 16, v{x}
            v_and_b32 v107, 0xffff0000, v{x}
            v_add_f32 v104, v104, v106
            v_add_f32 v105, v105, v107
            v_cvt_pk_bf16_f32 v{c}, v104, v105
            """)
        a(f"""
        buffer_store_dwordx4 v[{64+4*i}:{67+4*i}], v{V_T+3}, s[{S_SRDC}:{S_SRDC+3}], s36 offen
        s_add_u32 s36, s36, {16*1152}
        """)
    a.label(Lend)
    a("s_endpgm")
    return kernel_desc(name, NVGPR_GEMM, 64)
```

```python
import sys, os
sys.path.insert(0, os.path.dirname(os.path.abspath(__file__)))
from asmlib import *
from kern_basic import *
from kern_gemm import *
from kern_attn import *
from kern_chain import *

REF = open('adaLN_cond__memory_aug_recurrent_mem_tr__geglu_ffn__prompt.s.ref').read()
header_comments = [l for l in REF.split('\n') if l.startswith(';') and '@launch' not in l and 'Override launch' not in l and 'grid=ceil' not in l]

def build(path, upto=None):
    a = Asm()
    descs = []
    launches = []
    def add(name, fn, grid, block, lds, *args):
        descs.append(fn(a, name, *args))
        launches.append(f"; @launch kernel={name} grid=({grid},1,1) block=({block},1,1) lds={lds}")
    add("mod_kernel", k_mod, MOD_WGS + ZERO_WGS, 576, 4608)
    add("ln1_kernel", k_ln, 512, 256, 0, ('arg', KA_X), WS_H1, 0, 1)
    add("qkv_kernel", k_qkv, 16 * 96, 256, 65536)
    add("chain_kernel", k_chain, 32, 256, CHAIN_LDS)
    add("attn_kernel", k_attn, 512, 256, 0)
    add("wo_kernel", k_resgemm, 80, 256, 65536, 4096, WS_O, KA_WO, ('arg', KA_X), ('ws', WS_X2), 2)
    add("ln2_kernel", k_ln, 512, 256, 0, ('ws', WS_X2), WS_H2, 3, 4)
    add("ffn1_kernel", k_ffn1, 16 * 72, 256, 65536)
    add("ffn2_kernel", k_resgemm, 80, 256, 65536, 4608, WS_ACT, KA_WD, ('ws', WS_X2), ('arg', KA_OUT), 5)
    if upto is not None:
        launches = launches[:upto]
    out = "\n".join(header_comments) + "\n" + "\n".join(launches) + "\n"
    out += '.amdgcn_target "amdgcn-amd-amdhsa--gfx950"\n.text\n'
    out += a.text()
    out += '.section .rodata,"a"\n' + "".join(descs)
    open(path, 'w').write(out)

if __name__ == "__main__":
    build(sys.argv[1] if len(sys.argv) > 1 else 'adaLN_cond__memory_aug_recurrent_mem_tr__geglu_ffn__prompt.s')
```
